```python
import torch

def _softmax(x, axis=-1):
    return torch.softmax(x, dim=axis)
def _gelu(x):
    return torch.nn.functional.gelu(x, approximate="tanh")
def _silu(x):
    return torch.nn.functional.silu(x)
def _sigmoid(x):
    return torch.sigmoid(x)
def _layernorm(x, axis=-1, eps=1e-5):
    m = x.mean(dim=axis, keepdim=True)
    v = x.var(dim=axis, keepdim=True, unbiased=False)
    return (x - m) / torch.sqrt(v + eps)
def _scatter_add(tgt, idx, src, axis=0):
    return tgt.clone().index_add_(axis, idx, src)
def _segment_sum(src, seg, n):
    out = torch.zeros((n,) + src.shape[1:], dtype=src.dtype)
    return out.index_add_(0, seg, src)
def _pad(x, pw):
    flat = tuple(v for pair in reversed(pw) for v in pair)
    return torch.nn.functional.pad(x, flat)

kernel_name = 'concat_heads__sliding_block_cached__sliding_block_cached__decode'

def setup_inputs():

    _w = (lambda a: (lambda t: t.to(torch.bfloat16) if t.is_floating_point() else t)(torch.as_tensor(a)))
    def _A_setup():
        B, Sq, D = 1, 1, 512
        Hq, Hkv, Sk, Dh = 32, 8, 32768, 128
        assert Hq % Hkv == 0, (Hq, Hkv)
        return {
            "x": _w((lambda *s: torch.randn(*s, dtype=torch.bfloat16) * 0.8)(B, Sq, D)),
            "k_cache": _w((lambda *s: torch.randn(*s, dtype=torch.bfloat16) * 0.8)(B, Hkv, Sk, Dh)),
            "v_cache": _w((lambda *s: torch.randn(*s, dtype=torch.bfloat16) * 0.05)(B, Hkv, Sk, Dh)),
            "wq": _w((lambda *s: torch.randn(*s, dtype=torch.bfloat16) * 0.8)(D, Hq * Dh) * (D ** -0.5)),
            "wo": _w((lambda *s: torch.randn(*s, dtype=torch.bfloat16) * 0.05)(Hq * Dh, D) * ((Hq * Dh) ** -0.5)),
        }
    _A_in = _A_setup()

    def _B_setup():
        B, Sq, D = 1, 1, 512
        Hq, Hkv, Sk, Dh = 32, 8, 32768, 128
        assert Hq % Hkv == 0, (Hq, Hkv)
        return {
            "x": _w((lambda *s: torch.randn(*s, dtype=torch.bfloat16) * 0.8)(B, Sq, D)),
            "k_cache": _w((lambda *s: torch.randn(*s, dtype=torch.bfloat16) * 0.8)(B, Hkv, Sk, Dh)),
            "v_cache": _w((lambda *s: torch.randn(*s, dtype=torch.bfloat16) * 0.05)(B, Hkv, Sk, Dh)),
            "wq": _w((lambda *s: torch.randn(*s, dtype=torch.bfloat16) * 0.8)(D, Hq * Dh) * (D ** -0.5)),
            "wo": _w((lambda *s: torch.randn(*s, dtype=torch.bfloat16) * 0.05)(Hq * Dh, D) * ((Hq * Dh) ** -0.5)),
        }
    _B_in = _B_setup()

    return {
        "A_x": _A_in["x"],
        "A_k_cache": _A_in["k_cache"],
        "A_v_cache": _A_in["v_cache"],
        "A_wq": _A_in["wq"],
        "A_wo": _A_in["wo"],
        "B_x": _B_in["x"],
        "B_k_cache": _B_in["k_cache"],
        "B_v_cache": _B_in["v_cache"],
        "B_wq": _B_in["wq"],
        "B_wo": _B_in["wo"],
    }

def reference(A_x, A_k_cache, A_v_cache, A_wq, A_wo, B_x, B_k_cache, B_v_cache, B_wq, B_wo):
    def _A_ref(x, k_cache, v_cache, wq, wo):
        B, Sq, D = x.shape
        Hq, Dh = 32, 128
        Hkv, Sk = k_cache.shape[1], k_cache.shape[2]
        W = min(4096, max(256, Sk // 4))
        rep = Hq // Hkv
        q = (lambda x, *d: x.permute(*d))((x @ wq).reshape(B, Sq, Hq, Dh), 0, 2, 1, 3)
        k = (lambda x, n, axis: torch.repeat_interleave(x, n, dim=axis))(k_cache[:, :, Sk - W:, :], rep, axis=1)
        v = (lambda x, n, axis: torch.repeat_interleave(x, n, dim=axis))(v_cache[:, :, Sk - W:, :], rep, axis=1)
        scores = torch.einsum("bhqd,bhkd->bhqk", q, k) * (Dh ** -0.5)
        p = _softmax(scores, axis=-1)
        o = torch.einsum("bhqk,bhkd->bhqd", p, v)
        return (lambda x, *d: x.permute(*d))(o, 0, 2, 1, 3).reshape(B, Sq, Hq * Dh) @ wo

    def _B_ref(x, k_cache, v_cache, wq, wo):
        B, Sq, D = x.shape
        Hq, Dh = 32, 128
        Hkv, Sk = k_cache.shape[1], k_cache.shape[2]
        W = min(4096, max(256, Sk // 4))
        rep = Hq // Hkv
        q = (lambda x, *d: x.permute(*d))((x @ wq).reshape(B, Sq, Hq, Dh), 0, 2, 1, 3)
        k = (lambda x, n, axis: torch.repeat_interleave(x, n, dim=axis))(k_cache[:, :, Sk - W:, :], rep, axis=1)
        v = (lambda x, n, axis: torch.repeat_interleave(x, n, dim=axis))(v_cache[:, :, Sk - W:, :], rep, axis=1)
        scores = torch.einsum("bhqd,bhkd->bhqk", q, k) * (Dh ** -0.5)
        p = _softmax(scores, axis=-1)
        o = torch.einsum("bhqk,bhkd->bhqd", p, v)
        return (lambda x, *d: x.permute(*d))(o, 0, 2, 1, 3).reshape(B, Sq, Hq * Dh) @ wo

    a = _A_ref(A_x, A_k_cache, A_v_cache, A_wq, A_wo)
    b = _B_ref(B_x, B_k_cache, B_v_cache, B_wq, B_wo)
    return torch.concatenate([a, b], axis=-1)
```

```python
import sys, argparse

NAME = "concat_heads__sliding_block_cached__sliding_block_cached__decode"

HEADER = """; Kernarg layout for this problem (104 bytes, ptrs only, base s[0:1]):
"""

WS_E = 0x0
WS_Q = 0x1000
WS_L = 0x10000
WS_O = 0x20000
WS_F = 0x100000
WS_T = 0x200000

L_QP = 0
L_QB = 4096
L_MX = 5120
L_LS = 5136
L_FA = 5264
L_R1 = 8192
L_R2 = 8192 + 16384
LDS_BYTES = 8192 + 32768

SPIN = 200000


class G:
    def __init__(self, o):
        self.o = o
        self.l = []
        self.nstamp = 0

    def e(self, s):
        self.l.append("    " + s)

    def lab(self, s):
        self.l.append(s + ":")

    def c(self, s):
        self.l.append("    ; " + s)

    def nop(self, n):
        while n > 0:
            k = min(n, 16)
            self.e(f"s_nop {k-1}")
            n -= k

    def stamp(self, i):
        if self.o.stamps:
            self.e(f"s_memrealtime s[{64+2*i}:{65+2*i}]")

    def dump_stamps(self, n):
        if not self.o.stamps:
            return
        e = self.e
        e("s_waitcnt lgkmcnt(0)")
        e("s_mov_b64 exec, 1")
        e("s_getreg_b32 s62, hwreg(HW_REG_HW_ID)")
        e("s_getreg_b32 s63, hwreg(HW_REG_XCC_ID)")
        e("s_mul_i32 s60, s2, 9")
        e("s_add_u32 s60, s60, s3")
        e("s_lshl_b32 s60, s60, 7")
        e(f"s_add_u32 s60, s60, {WS_T}")
        e("v_mov_b32 v1, s60")
        for i in range(n):
            e(f"v_mov_b32 v2, s{64+2*i}")
            e(f"global_store_dword v1, v2, s[20:21] offset:{4*i}")
        e("v_mov_b32 v2, s62")
        e("global_store_dword v1, v2, s[20:21] offset:120")
        e("v_mov_b32 v2, s63")
        e("global_store_dword v1, v2, s[20:21] offset:124")


def gen(o):
    g = G(o)
    e, lab, c, nop = g.e, g.lab, g.c, g.nop
    NT = " nt" if o.nt else ""
    WQ, K, V, WO = 16, 32, 64, 96
    ACC, XA = 112, 120
    vL16, vMA, vMB = 2, 4, 5
    vKO, vVO = 6, 7
    g.stamp(0)
    e("s_cmp_ge_u32 s2, 256")
    e("s_cbranch_scc1 L_end")
    e("s_and_b32 s14, s2, 8")
    e("s_mul_i32 s14, s14, 5")
    e("s_load_dwordx8 s[4:11], s[0:1], s14")
    e("s_load_dwordx2 s[12:13], s[0:1], s14 offset:32")
    e("s_load_dwordx2 s[20:21], s[0:1], 96")
    e("s_load_dwordx2 s[16:17], s[0:1], 80")
    e("v_lshrrev_b32 v1, 6, v0")
    e("s_lshr_b32 s24, s2, 4")
    e("v_readfirstlane_b32 s3, v1")
    e("s_and_b32 s25, s2, 7")
    e("s_and_b32 s26, s2, 15")
    e("s_bfe_u32 s27, s2, 0x10003")
    e("v_and_b32 v1, 63, v0")
    e(f"v_lshlrev_b32 v{vL16}, 4, v1")
    e("s_cmp_eq_u32 s3, 8")
    e("s_cbranch_scc1 L_comm")

    c("address offsets")
    e("v_and_b32 v3, 3, v0")
    e("v_lshlrev_b32 v8, 4, v3")
    e("s_mov_b64 s[28:29], 0xffff")
    e(f"v_lshlrev_b64 v[{vMA}:{vMB}], v8, s[28:29]")
    e("v_lshrrev_b32 v9, 2, v0")
    e("v_lshlrev_b32 v10, 3, v9")
    e("v_lshl_or_b32 v11, v9, 15, v8")
    e("v_add_u32 v12, 0x2000, v11")
    e("v_add_u32 v13, 0x4000, v11")
    e("v_add_u32 v14, 0x6000, v11")
    if o.kmode == "quarter":
        e("v_and_b32 v15, 12, v1")
        e(f"v_lshl_or_b32 v{vKO}, v15, 6, v8")
        e("v_and_b32 v15, 48, v1")
        e(f"v_lshl_or_b32 v{vKO}, v15, 2, v{vKO}")
        e(f"v_mov_b32 v{vVO}, v{vL16}")
    else:
        e("v_and_b32 v15, 15, v1")
        e("v_and_b32 v3, 48, v1")
        e(f"v_lshl_or_b32 v{vKO}, v15, 8, v3")
        e("v_lshlrev_b32 v15, 4, v15")
        e(f"v_lshl_or_b32 v{vVO}, v3, 6, v15")
    e("s_lshl_b32 s30, s25, 23")
    e("s_lshl_b32 s31, s24, 16")
    e("s_add_u32 s30, s30, s31")
    e("s_lshl_b32 s31, s3, 13")
    e("s_add_u32 s30, s30, s31")
    e(f"s_add_u32 s30, s30, {28672*256 + 4096}")
    e("s_lshl_b32 s31, s25, 10")
    e("s_lshl_b32 s32, s24, 6")
    e("s_add_u32 s31, s31, s32")
    e("s_lshl_b32 s32, s25, 19")
    e("s_lshl_b32 s33, s24, 15")
    e("s_add_u32 s32, s32, s33")
    e("s_lshl_b32 s33, s3, 12")
    e("s_add_u32 s32, s32, s33")
    e("s_lshl_b32 s33, s27, 8")
    e("s_waitcnt lgkmcnt(0)")
    g.stamp(1)
    e("s_add_u32 s10, s10, s31")
    e("s_addc_u32 s11, s11, 0")
    e("global_load_dwordx2 v[8:9], v10, s[4:5]")
    for L in range(4):
        e(f"global_load_dwordx4 v[{WQ+4*L}:{WQ+4*L+3}], v{11+L}, s[10:11]{NT}")
    e("s_add_u32 s6, s6, s30")
    e("s_addc_u32 s7, s7, 0")
    e("s_add_u32 s8, s8, s30")
    e("s_addc_u32 s9, s9, 0")
    e("s_add_u32 s12, s12, s32")
    e("s_addc_u32 s13, s13, 0")
    e("s_load_dword s22, s[20:21], s33")

    def koff(m):
        if o.kmode == "quarter":
            return -4096 + 1024 * m
        T, s = m >> 2, m & 3
        return -4096 + T * 4096 + s * 64

    def voff(m):
        if o.kmode == "quarter":
            return -4096 + 1024 * m
        T, r = m >> 2, m & 3
        return -4096 + T * 4096 + r * 256

    seq = [("K", m) for m in range(8)] + [("V", m) for m in range(8)] + [("W", m) for m in range(4)]
    state = {"issued": 0}

    def issue(n):
        for _ in range(n):
            if state["issued"] >= len(seq):
                return
            t, m = seq[state["issued"]]
            state["issued"] += 1
            if t == "K":
                e(f"global_load_dwordx4 v[{K+4*m}:{K+4*m+3}], v{vKO}, s[6:7] offset:{koff(m)}{NT}")
            elif t == "V":
                e(f"global_load_dwordx4 v[{V+4*m}:{V+4*m+3}], v{vVO}, s[8:9] offset:{voff(m)}{NT}")
            else:
                e(f"global_load_dwordx4 v[{WO+4*m}:{WO+4*m+3}], v{vL16}, s[12:13] offset:{1024*m}{NT}")

    def wait_seq(idx):
        n = state["issued"] - (idx + 1)
        assert n >= 0
        e(f"s_waitcnt vmcnt({n})")

    issue(o.pre)
    c("x operand")
    e(f"s_waitcnt vmcnt({state['issued'] + 4})")
    sel = [0x01000100, 0x03020302, 0x05040504, 0x07060706]
    for L in range(4):
        e(f"s_mov_b32 s34, {sel[L]:#x}")
        e("v_perm_b32 v3, v9, v8, s34")
        e(f"v_and_b32 v{XA+2*L}, v3, v{vMA}")
        e(f"v_and_b32 v{XA+2*L+1}, v3, v{vMB}")
    e("v_lshrrev_b32 v10, 4, v0")
    e("v_and_b32 v3, 3, v0")
    e("v_lshlrev_b32 v3, 5, v3")
    e("v_lshl_or_b32 v10, v10, 7, v3")
    for L in range(4):
        e(f"s_waitcnt vmcnt({state['issued'] + 3 - L})")
        cl = "0" if L == 0 else f"v[{ACC}:{ACC+3}]"
        ch = "0" if L == 0 else f"v[{ACC+4}:{ACC+7}]"
        e(f"v_mfma_f32_16x16x16_bf16 v[{ACC}:{ACC+3}], v[{XA+2*L}:{XA+2*L+1}], v[{WQ+4*L}:{WQ+4*L+1}], {cl}")
        e(f"v_mfma_f32_16x16x16_bf16 v[{ACC+4}:{ACC+7}], v[{XA+2*L}:{XA+2*L+1}], v[{WQ+4*L+2}:{WQ+4*L+3}], {ch}")
    g.stamp(2)
    issue(o.post)
    e("s_mov_b32 exec_lo, 0x00f0000f")
    e("s_mov_b32 exec_hi, 0xf0000f00")
    nop(max(0, 8 - 2 - o.post))
    e(f"ds_write_b128 v10, v[{ACC}:{ACC+3}] offset:{L_QP}")
    e(f"ds_write_b128 v10, v[{ACC+4}:{ACC+7}] offset:{L_QP+16}")
    e("s_mov_b64 exec, -1")
    e("s_waitcnt lgkmcnt(0)")
    e("s_barrier")
    depth = o.depth
    k = 0
    while state["issued"] < o.before_b2:
        idx = state["issued"] - depth
        if idx >= 0:
            wait_seq(idx)
        issue(1)
    e("s_add_u32 s22, s22, 1")
    e("s_and_b32 s23, s22, 0xfff")
    if o.kmode == "quarter":
        e(f"v_mov_b32 v10, v{vKO}")
    else:
        e("v_and_b32 v10, 12, v1")
        e("v_and_b32 v3, 48, v1")
        e("v_lshl_or_b32 v10, v10, 6, v3")
    e("v_and_b32 v11, 12, v1")
    e("s_barrier")
    g.stamp(3)
    Q = WQ
    if o.kmode == "quarter":
        e(f"ds_read_b128 v[{Q}:{Q+3}], v10 offset:{L_QB}")
    else:
        for s in range(4):
            e(f"ds_read_b128 v[{Q+4*s}:{Q+4*s+3}], v10 offset:{L_QB+64*s}")
    wait_seq(7)
    e("s_waitcnt lgkmcnt(0)")
    g.stamp(4)
    S = ACC
    if o.kmode == "quarter":
        for m in range(8):
            e(f"v_mfma_f32_16x16x32_bf16 v[{K+4*m}:{K+4*m+3}], v[{K+4*m}:{K+4*m+3}], v[{Q}:{Q+3}], 0")
        nop(1)
        for st in range(4):
            for m in range(8):
                qp = f"quad_perm:[{st},{st},{st},{st}] row_mask:0xf bank_mask:0xf"
                if st == 0:
                    e(f"v_mov_b32_dpp v{S+m}, v{K+4*m} {qp}")
                else:
                    e(f"v_add_f32_dpp v{S+m}, v{K+4*m+st}, v{S+m} {qp}")
    else:
        for s in range(4):
            for T in range(2):
                cc = "0" if s == 0 else f"v[{S+4*T}:{S+4*T+3}]"
                m = 4 * T + s
                e(f"v_mfma_f32_16x16x32_bf16 v[{S+4*T}:{S+4*T+3}], v[{K+4*m}:{K+4*m+3}], v[{Q+4*s}:{Q+4*s+3}], {cc}")
        nop(8)
    e(f"v_max3_f32 v3, v{S}, v{S+1}, v{S+2}")
    e(f"v_max3_f32 v3, v3, v{S+3}, v{S+4}")
    e(f"v_max3_f32 v3, v3, v{S+5}, v{S+6}")
    e(f"v_max_f32 v3, v3, v{S+7}")
    e(f"ds_max_f32 v11, v3 offset:{L_MX}")
    e("s_waitcnt lgkmcnt(0)")
    e("s_barrier")
    e(f"ds_read_b32 v3, v11 offset:{L_MX}")
    e("s_mov_b32 s34, 0x3e0293ee")
    e("v_mov_b32 v12, 0x3f803f80")
    e("v_mov_b32 v13, v12")
    e("v_mov_b32 v14, v12")
    e("v_mov_b32 v15, v12")
    e("s_waitcnt lgkmcnt(0)")
    e("v_mul_f32 v3, s34, v3")
    for m in range(8):
        e(f"v_fma_f32 v{S+m}, v{S+m}, s34, -v3")
    for m in range(8):
        e(f"v_exp_f32 v{S+m}, v{S+m}")
    P = K
    for m in range(8):
        e(f"v_cvt_pk_bf16_f32 v{S+m}, v{S+m}, v{S+m}")
    for m in range(8):
        e(f"v_and_b32 v{P+2*m}, v{S+m}, v{vMA}")
        e(f"v_and_b32 v{P+2*m+1}, v{S+m}, v{vMB}")
    e("v_lshrrev_b32 v10, 4, v1")
    e("s_lshl_b32 s35, s3, 2")
    e("v_lshl_add_u32 v10, v10, 5, s35")
    LA = K + 16
    for mm in range(4):
        cc = "0" if mm == 0 else f"v[{LA}:{LA+3}]"
        e(f"v_mfma_f32_16x16x32_bf16 v[{LA}:{LA+3}], v[{P+4*mm}:{P+4*mm+3}], v[12:15], {cc}")
    n0 = state["issued"]
    issue(100)
    nop(max(0, 8 - (state["issued"] - n0)))
    e(f"ds_write_b32 v10, v{LA} offset:{L_LS}")
    e("s_waitcnt lgkmcnt(0)")
    e("s_barrier")
    g.stamp(5)
    e("s_lshl_b32 s35, s3, 11")
    e("v_lshl_add_u32 v10, v1, 5, s35")
    e("v_lshlrev_b32 v11, 2, v0")
    e("v_lshrrev_b32 v12, 7, v0")
    e("v_lshlrev_b32 v12, 2, v12")
    e("s_lshl_b32 s35, s26, 15")
    e(f"s_add_u32 s35, s35, {WS_O}")
    e("s_lshl_b32 s36, s24, 7")
    e("s_add_u32 s36, s36, s35")
    e("v_lshrrev_b32 v13, 5, v0")
    e("v_lshl_add_u32 v13, v13, 11, s36")
    e("v_and_b32 v3, 31, v0")
    e("v_lshl_add_u32 v13, v3, 2, v13")
    e("s_lshl_b32 s36, s24, 11")
    e("s_add_u32 s36, s36, s35")
    e("v_and_b32 v3, 15, v1")
    e("v_lshl_add_u32 v14, v3, 7, s36")
    e("v_lshrrev_b32 v3, 4, v0")
    e("v_lshl_add_u32 v14, v3, 2, v14")
    e("s_lshl_b32 s35, s27, 18")
    e(f"s_add_u32 s35, s35, {WS_F}")
    e("s_lshl_b32 s36, s25, 4")
    e("s_add_u32 s36, s36, s24")
    if o.flayout == "cons":
        e("s_lshl_b32 s36, s36, 4")
        e("s_add_u32 s36, s36, s35")
        e("v_lshrrev_b32 v15, 2, v0")
        e("v_lshl_add_u32 v15, v15, 11, s36")
        e("v_and_b32 v3, 3, v0")
        e("v_lshl_add_u32 v15, v3, 2, v15")
    else:
        e("s_lshl_b32 s36, s36, 11")
        e("s_add_u32 s36, s36, s35")
        e("v_add_u32 v15, s36, v11")
    e("s_movk_i32 s37, 0xfff")
    e("v_mov_b32 v9, s23")
    OA = XA
    for m in range(8):
        wait_seq(8 + m)
        cl = "0" if m == 0 else f"v[{OA}:{OA+3}]"
        ch = "0" if m == 0 else f"v[{OA+4}:{OA+7}]"
        e(f"v_mfma_f32_16x16x16_bf16 v[{OA}:{OA+3}], v[{P+2*m}:{P+2*m+1}], v[{V+4*m}:{V+4*m+1}], {cl}")
        e(f"v_mfma_f32_16x16x16_bf16 v[{OA+4}:{OA+7}], v[{P+2*m}:{P+2*m+1}], v[{V+4*m+2}:{V+4*m+3}], {ch}")
    g.stamp(6)
    nop(7)
    e(f"ds_write_b128 v10, v[{OA}:{OA+3}] offset:{L_R1}")
    e(f"ds_write_b128 v10, v[{OA+4}:{OA+7}] offset:{L_R1+16}")
    e("s_waitcnt lgkmcnt(0)")
    e("s_barrier")
    R = V

    def reduce8(base):
        for i in range(4):
            e(f"ds_read2st64_b32 v[{R+2*i}:{R+2*i+1}], v11 offset0:{base//256+16*i} offset1:{base//256+16*i+8}")

    def sum8():
        e(f"v_pk_add_f32 v[{R}:{R+1}], v[{R}:{R+1}], v[{R+2}:{R+3}]")
        e(f"v_pk_add_f32 v[{R+4}:{R+5}], v[{R+4}:{R+5}], v[{R+6}:{R+7}]")
        e(f"v_pk_add_f32 v[{R}:{R+1}], v[{R}:{R+1}], v[{R+4}:{R+5}]")
        e(f"v_add_f32 v{R}, v{R}, v{R+1}")

    reduce8(L_R1)
    e(f"ds_read_b32 v3, v12 offset:{L_FA}")
    e("s_waitcnt lgkmcnt(0)")
    sum8()
    e(f"v_mul_f32 v{R}, v{R}, v3")
    e(f"v_add_u32 v{R}, 0x800, v{R}")
    e(f"v_bfi_b32 v{R}, s37, v9, v{R}")
    e(f"global_store_dword v13, v{R}, s[20:21] sc1")
    g.stamp(7)
    e("s_mov_b32 s38, 0x05040100")
    e("s_mov_b32 s39, 0x07060302")
    e(f"s_mov_b32 s40, {SPIN}")
    e("global_load_dword v3, v14, s[20:21] sc1")
    e("s_waitcnt vmcnt(2)")
    WP = K
    for pr in range(2):
        for d in range(4):
            a, b = WO + 8 * pr + d, WO + 8 * pr + 4 + d
            e(f"v_perm_b32 v{WP+8*pr+2*d}, v{b}, v{a}, s38")
            e(f"v_perm_b32 v{WP+8*pr+2*d+1}, v{b}, v{a}, s39")
    for i in range(8):
        e(f"v_mov_b32 v{OA+i}, 0")
    g.stamp(8)
    e("s_branch L_opoll_chk")
    lab("L_opoll")
    e("global_load_dword v3, v14, s[20:21] sc1")
    lab("L_opoll_chk")
    e("s_waitcnt vmcnt(0)")
    e("v_xor_b32 v3, s23, v3")
    e("v_and_b32 v8, s37, v3")
    e("v_cmp_ne_u32 vcc, 0, v8")
    e("s_sub_u32 s40, s40, 1")
    e("s_cbranch_scc1 L_opoll_done")
    e("s_cbranch_vccnz L_opoll")
    lab("L_opoll_done")
    g.stamp(9)
    for sh in (8, 4, 2, 1):
        e(f"v_add_f32_dpp v3, v3, v3 row_ror:{sh} row_mask:0xf bank_mask:0xf")
        nop(2)
    e("v_cvt_pk_bf16_f32 v3, v3, v3")
    nop(1)
    e("v_readlane_b32 s41, v3, 0")
    e("v_readlane_b32 s42, v3, 16")
    e("v_readlane_b32 s43, v3, 32")
    e("v_readlane_b32 s44, v3, 48")
    nop(1)
    e("s_pack_ll_b32_b16 s41, s41, s42")
    e("s_pack_ll_b32_b16 s43, s43, s44")
    for i in range(8):
        e(f"v_dot2c_f32_bf16 v{OA+i}, s41, v{WP+i}")
    for i in range(8):
        e(f"v_dot2c_f32_bf16 v{OA+i}, s43, v{WP+8+i}")
    nop(3)
    e(f"ds_write_b128 v10, v[{OA}:{OA+3}] offset:{L_R2}")
    e(f"ds_write_b128 v10, v[{OA+4}:{OA+7}] offset:{L_R2+16}")
    e("s_waitcnt lgkmcnt(0)")
    e("s_barrier")
    reduce8(L_R2)
    e("s_waitcnt lgkmcnt(0)")
    sum8()
    e(f"v_add_u32 v{R}, 0x800, v{R}")
    e(f"v_bfi_b32 v{R}, s37, v9, v{R}")
    e(f"global_store_dword v15, v{R}, s[20:21] sc1")
    g.stamp(10)
    g.dump_stamps(11)
    e("s_endpgm")

    lab("L_comm")
    if o.prio:
        e("s_setprio 3")
    e("s_lshl_b32 s33, s27, 8")
    e("v_lshlrev_b32 v3, 2, v1")
    e("v_mov_b32 v4, 0xff800000")
    e(f"ds_write_b32 v3, v4 offset:{L_MX}")
    e("s_waitcnt lgkmcnt(0)")
    g.stamp(1)
    e("s_load_dword s22, s[20:21], s33")
    e("s_lshl_b32 s35, s26, 11")
    e(f"s_add_u32 s35, s35, {WS_Q}")
    e("s_lshl_b32 s36, s24, 7")
    e("s_add_u32 s36, s36, s35")
    e("v_add_u32 v5, s36, v3")
    e("v_lshl_add_u32 v6, v1, 5, s35")
    e("s_lshl_b32 s35, s26, 10")
    e(f"s_add_u32 s35, s35, {WS_L}")
    e("v_and_b32 v4, 48, v1")
    e("v_add_u32 v8, s35, v4")
    e("s_lshl_b32 s36, s24, 6")
    e("v_add_u32 v7, s36, v8")
    e("v_and_b32 v9, 15, v1")
    e("v_lshl_add_u32 v8, v9, 6, v8")
    e("v_lshlrev_b32 v9, 1, v4")
    e("v_lshrrev_b32 v10, 2, v4")
    e("s_lshl_b32 s35, s27, 18")
    e(f"s_add_u32 s35, s35, {WS_F}")
    e("s_lshl_b32 s38, s25, 4")
    e("s_add_u32 s38, s38, s24")
    if o.flayout == "cons":
        e("s_lshl_b32 s36, s38, 11")
        e("s_add_u32 s36, s36, s35")
        e(f"v_add_u32 v11, s36, v{vL16}")
        e("v_add_u32 v12, 0x400, v11")
    else:
        e("s_lshl_b32 s36, s38, 4")
        e("s_add_u32 s36, s36, s35")
        e("v_lshl_add_u32 v11, v1, 11, s36")
        e("v_add_u32 v12, 0x20000, v11")
    e("s_mov_b32 s44, 0xaaaaaaaa")
    e("s_mov_b32 s45, 0xaaaaaaaa")
    e(f"s_mov_b32 s40, {SPIN}")
    e("s_mov_b32 s34, 0x3e0293ee")
    e("s_movk_i32 s37, 0xfff")
    e("s_waitcnt lgkmcnt(0)")
    e("s_add_u32 s22, s22, 1")
    e("s_and_b32 s23, s22, 0xfff")
    e("v_mov_b32 v41, s22")
    e("v_mov_b32 v42, s22")
    e("v_mov_b32 v43, s22")
    e("s_barrier")
    g.stamp(2)
    for i in range(8):
        e(f"ds_read2st64_b32 v[{16+2*i}:{17+2*i}], v3 offset0:{L_QP//256+2*i} offset1:{L_QP//256+2*i+1}")
    e("s_waitcnt lgkmcnt(0)")
    for i in range(4):
        e(f"v_pk_add_f32 v[{16+2*i}:{17+2*i}], v[{16+2*i}:{17+2*i}], v[{24+2*i}:{25+2*i}]")
    e("v_pk_add_f32 v[16:17], v[16:17], v[20:21]")
    e("v_pk_add_f32 v[18:19], v[18:19], v[22:23]")
    e("v_pk_add_f32 v[16:17], v[16:17], v[18:19]")
    e("v_add_f32 v16, v16, v17")
    e("v_mov_b32 v17, v16")
    nop(2)
    e("v_permlane32_swap_b32 v16, v17")
    nop(1)
    e("v_add_f32 v16, v16, v17")
    nop(2)
    e("v_mov_b32_dpp v17, v16 quad_perm:[1,1,3,3] row_mask:0xf bank_mask:0xf")
    e("v_cvt_pk_bf16_f32 v16, v16, v17")
    e("v_cndmask_b32 v16, v16, v41, s[44:45]")
    e("s_mov_b32 exec_hi, 0")
    e("global_store_dword v5, v16, s[20:21] sc1")
    e("s_mov_b64 exec, -1")
    g.stamp(3)
    lab("L_qpoll")
    e("global_load_dwordx4 v[16:19], v6, s[20:21] sc1")
    e("global_load_dwordx4 v[20:23], v6, s[20:21] offset:16 sc1")
    e("s_waitcnt vmcnt(0)")
    e("v_xor_b32 v17, v17, v41")
    e("v_xor_b32 v19, v19, v41")
    e("v_xor_b32 v21, v21, v41")
    e("v_xor_b32 v23, v23, v41")
    e("v_or3_b32 v17, v17, v19, v21")
    e("v_or_b32 v17, v17, v23")
    e("v_cmp_ne_u32 vcc, 0, v17")
    e("s_sub_u32 s40, s40, 1")
    e("s_cbranch_scc1 L_qpoll_done")
    e("s_cbranch_vccnz L_qpoll")
    lab("L_qpoll_done")
    e(f"v_add_u32 v17, {L_QB}, v{vL16}")
    e("ds_write2_b32 v17, v16, v18 offset0:0 offset1:1")
    e("ds_write2_b32 v17, v20, v22 offset0:2 offset1:3")
    e("s_waitcnt lgkmcnt(0)")
    g.stamp(4)
    e("s_barrier")
    e("s_barrier")
    e("s_barrier")
    g.stamp(5)
    e(f"ds_read_b128 v[16:19], v9 offset:{L_LS}")
    e(f"ds_read_b128 v[20:23], v9 offset:{L_LS+16}")
    e(f"ds_read_b32 v24, v10 offset:{L_MX}")
    e("s_waitcnt lgkmcnt(0)")
    e("v_pk_add_f32 v[16:17], v[16:17], v[18:19]")
    e("v_pk_add_f32 v[20:21], v[20:21], v[22:23]")
    e("v_pk_add_f32 v[16:17], v[16:17], v[20:21]")
    e("v_add_f32 v16, v16, v17")
    e("v_log_f32 v16, v16")
    e("v_mul_f32 v24, s34, v24")
    e("v_add_f32 v40, v16, v24")
    e("s_mov_b32 exec_lo, 0x00010001")
    e("s_mov_b32 exec_hi, 0x00010001")
    e("global_store_dwordx4 v7, v[40:43], s[20:21] sc1")
    e("s_mov_b64 exec, -1")
    e(f"s_mov_b32 s40, {SPIN}")
    lab("L_lpoll")
    e("global_load_dwordx4 v[16:19], v8, s[20:21] sc1")
    e("s_waitcnt vmcnt(0)")
    e("v_xor_b32 v17, v17, v41")
    e("v_xor_b32 v18, v18, v41")
    e("v_xor_b32 v19, v19, v41")
    e("v_or3_b32 v17, v17, v18, v19")
    e("v_cmp_ne_u32 vcc, 0, v17")
    e("s_sub_u32 s40, s40, 1")
    e("s_cbranch_scc1 L_lpoll_done")
    e("s_cbranch_vccnz L_lpoll")
    lab("L_lpoll_done")
    g.stamp(6)
    e("v_max_f32_dpp v17, v16, v16 row_ror:8 row_mask:0xf bank_mask:0xf")
    nop(2)
    for sh in (4, 2, 1):
        e(f"v_max_f32_dpp v17, v17, v17 row_ror:{sh} row_mask:0xf bank_mask:0xf")
        nop(2)
    e("v_sub_f32 v16, v16, v17")
    e("v_sub_f32 v24, v24, v17")
    e("v_exp_f32 v16, v16")
    e("v_exp_f32 v24, v24")
    nop(1)
    for sh in (8, 4, 2, 1):
        e(f"v_add_f32_dpp v16, v16, v16 row_ror:{sh} row_mask:0xf bank_mask:0xf")
        nop(2)
    e("v_rcp_f32 v16, v16")
    nop(1)
    e("v_mul_f32 v24, v24, v16")
    e(f"ds_write_b32 v10, v24 offset:{L_FA}")
    e("s_waitcnt lgkmcnt(0)")
    g.stamp(7)
    e("s_barrier")
    e("s_barrier")
    g.stamp(8)
    e(f"s_mov_b32 s40, {SPIN}")
    lab("L_fpoll")
    e("global_load_dwordx4 v[16:19], v11, s[20:21] sc1")
    e("global_load_dwordx4 v[20:23], v12, s[20:21] sc1")
    e("s_waitcnt vmcnt(0)")
    for i in range(8):
        e(f"v_xor_b32 v{16+i}, s23, v{16+i}")
    e("v_or3_b32 v24, v16, v17, v18")
    e("v_or3_b32 v25, v19, v20, v21")
    e("v_or3_b32 v24, v24, v22, v23")
    e("v_or_b32 v24, v24, v25")
    e("v_and_b32 v24, s37, v24")
    e("v_cmp_ne_u32 vcc, 0, v24")
    e("s_sub_u32 s40, s40, 1")
    e("s_cbranch_scc1 L_fpoll_done")
    e("s_cbranch_vccnz L_fpoll")
    lab("L_fpoll_done")
    g.stamp(9)
    e("v_pk_add_f32 v[16:17], v[16:17], v[20:21]")
    e("v_pk_add_f32 v[18:19], v[18:19], v[22:23]")
    nop(1)
    for ctl in ("row_shr:1 row_mask:0xf", "row_shr:2 row_mask:0xf", "row_shr:4 row_mask:0xf", "row_shr:8 row_mask:0xf",
                "row_bcast:15 row_mask:0xa", "row_bcast:31 row_mask:0xc"):
        for i in range(4):
            e(f"v_add_f32_dpp v{16+i}, v{16+i}, v{16+i} {ctl} bank_mask:0xf")
    e("v_cvt_pk_bf16_f32 v16, v16, v17")
    e("v_cvt_pk_bf16_f32 v17, v18, v19")
    e("s_lshl_b32 s35, s27, 10")
    e("s_lshl_b32 s36, s38, 3")
    e("s_add_u32 s35, s35, s36")
    e("v_mov_b32 v3, s35")
    e("s_mov_b32 exec_lo, 0")
    e("s_mov_b32 exec_hi, 0x80000000")
    e("global_store_dwordx2 v3, v[16:17], s[16:17]")
    e("s_cmp_lg_u32 s38, 0")
    e("s_cbranch_scc1 L_noepoch")
    e("v_mov_b32 v3, s33")
    e("global_store_dword v3, v41, s[20:21] sc1")
    lab("L_noepoch")
    g.stamp(10)
    g.dump_stamps(11)
    lab("L_end")
    e("s_endpgm")

    body = "\n".join(g.l)
    sg = 96 if o.stamps else 48
    return f"""{HEADER}; @launch grid=(256,1,1) block=(576,1,1) lds={LDS_BYTES}
.amdgcn_target "amdgcn-amd-amdhsa--gfx950"
.text
.globl {NAME}_kernel
.p2align 8
.type {NAME}_kernel,@function
{NAME}_kernel:
{body}
.section .rodata,"a"
.p2align 6
.amdhsa_kernel {NAME}_kernel
  .amdhsa_next_free_vgpr 128
  .amdhsa_next_free_sgpr {sg}
  .amdhsa_accum_offset 128
  .amdhsa_group_segment_fixed_size 0
  .amdhsa_kernarg_size 104
  .amdhsa_user_sgpr_count 2
  .amdhsa_user_sgpr_kernarg_segment_ptr 1
  .amdhsa_system_sgpr_workgroup_id_x 1
.end_amdhsa_kernel
"""


def main():
    ap = argparse.ArgumentParser()
    ap.add_argument("-o", "--out", default="-")
    ap.add_argument("--stamps", action="store_true")
    ap.add_argument("--kmode", default="quarter", choices=["quarter", "plain"])
    ap.add_argument("--flayout", default="cons", choices=["cons", "prod"])
    ap.add_argument("--nt", type=int, default=0)
    ap.add_argument("--prio", type=int, default=1)
    ap.add_argument("--pre", type=int, default=4)
    ap.add_argument("--post", type=int, default=4)
    ap.add_argument("--depth", type=int, default=8)
    ap.add_argument("--before_b2", type=int, default=16)
    o = ap.parse_args()
    s = gen(o)
    if o.out == "-":
        sys.stdout.write(s)
    else:
        open(o.out, "w").write(s)


if __name__ == "__main__":
    main()
```
